```python
import torch

def _softmax(x, axis=-1):
    return torch.softmax(x, dim=axis)
def _gelu(x):
    return torch.nn.functional.gelu(x, approximate="tanh")
def _silu(x):
    return torch.nn.functional.silu(x)
def _sigmoid(x):
    return torch.sigmoid(x)
def _layernorm(x, axis=-1, eps=1e-5):
    m = x.mean(dim=axis, keepdim=True)
    v = x.var(dim=axis, keepdim=True, unbiased=False)
    return (x - m) / torch.sqrt(v + eps)
def _scatter_add(tgt, idx, src, axis=0):
    return tgt.clone().index_add_(axis, idx, src)
def _segment_sum(src, seg, n):
    out = torch.zeros((n,) + src.shape[1:], dtype=src.dtype)
    return out.index_add_(0, seg, src)
def _pad(x, pw):
    flat = tuple(v for pair in reversed(pw) for v in pair)
    return torch.nn.functional.pad(x, flat)

kernel_name = 'parallel_sum__grouped_kv_mqa__glu_gated_geglu__prompt'

def setup_inputs():

    _w = (lambda a: (lambda t: t.to(torch.bfloat16) if t.is_floating_point() else t)(torch.as_tensor(a)))
    def _A_setup():
        B, S, D, H = 1, 2048, 512, 32
        Dh = D // H
        return {
            "x": _w((lambda *s: torch.randn(*s, dtype=torch.bfloat16) * 0.05)(B, S, D)),
            "wq": _w((lambda *s: torch.randn(*s, dtype=torch.bfloat16) * 0.05)(D, H * Dh)),
            "wk": _w((lambda *s: torch.randn(*s, dtype=torch.bfloat16) * 0.05)(D, Dh)),
            "wv": _w((lambda *s: torch.randn(*s, dtype=torch.bfloat16) * 0.05)(D, Dh)),
            "wo": _w((lambda *s: torch.randn(*s, dtype=torch.bfloat16) * 0.05)(H * Dh, D)),
        }
    _A_in = _A_setup()

    def _B_setup():
        B, S, Dm, Df = 1, 2048, 512, 1376
        return {
            "x": _w((lambda *s: torch.randn(*s, dtype=torch.bfloat16) * 0.05)(B, S, Dm)),
            "w_gate": _w((lambda *s: torch.randn(*s, dtype=torch.bfloat16) * 0.4)(Dm, Df) * (Dm ** -0.5)),
            "w_up": _w((lambda *s: torch.randn(*s, dtype=torch.bfloat16) * 0.4)(Dm, Df) * (Dm ** -0.5)),
            "w_down": _w((lambda *s: torch.randn(*s, dtype=torch.bfloat16) * 0.4)(Df, Dm) * (Df ** -0.5)),
        }
    _B_in = _B_setup()

    return {
        "A_x": _A_in["x"],
        "A_wq": _A_in["wq"],
        "A_wk": _A_in["wk"],
        "A_wv": _A_in["wv"],
        "A_wo": _A_in["wo"],
        "B_x": _B_in["x"],
        "B_w_gate": _B_in["w_gate"],
        "B_w_up": _B_in["w_up"],
        "B_w_down": _B_in["w_down"],
    }

def reference(A_x, A_wq, A_wk, A_wv, A_wo, B_x, B_w_gate, B_w_up, B_w_down):
    def _A_ref(x, wq, wk, wv, wo):
        B, S, D = x.shape
        H = 32
        Dh = D // H
        q = (lambda x, *d: x.permute(*d))((x @ wq).reshape(B, S, H, Dh), 0, 2, 1, 3)
        k = x @ wk
        v = x @ wv
        scores = torch.einsum("bhqd,bkd->bhqk", q, k) * (Dh ** -0.5)
        p = _softmax(scores, axis=-1)
        o = torch.einsum("bhqk,bkd->bhqd", p, v)
        return (lambda x, *d: x.permute(*d))(o, 0, 2, 1, 3).reshape(B, S, H * Dh) @ wo

    def _B_ref(x, w_gate, w_up, w_down):
        g = torch.einsum("bsd,df->bsf", x, w_gate)
        u = torch.einsum("bsd,df->bsf", x, w_up)
        h = _gelu(g) * u
        return torch.einsum("bsf,fd->bsd", h, w_down)

    x = A_x
    xn = _layernorm(x, axis=-1)
    return x + _A_ref(xn, A_wq, A_wk, A_wv, A_wo) + _B_ref(xn, B_w_gate, B_w_up, B_w_down)
```

```python
XN=0; QO=2<<20; KV=4<<20; KN=KV+(128<<10); WGU=5<<20; WD=8<<20; WO=10<<20; PART=12<<20
WS_SIZE=32<<20
class E:
    def __init__(s): s.l=[]
    def __call__(s,t):
        for x in t.strip('\n').split('\n'): s.l.append(x.strip())
    def txt(s): return '\n'.join(s.l)+'\n'
def srd(e,d,b,size):
    e(f"s_mov_b32 s{d}, s{b}\ns_mov_b32 s{d+1}, s{b+1}\ns_mov_b32 s{d+2}, {size}\ns_mov_b32 s{d+3}, 0x00020000")
def vr(a,n): return f"v[{a}:{a+n-1}]"
def head(name): return f".text\n.globl {name}\n.p2align 8\n.type {name},@function\n{name}:\n"
def desc(name,vg,sg=96,acc=None):
    acc=acc or ((vg+3)//4*4)
    return f""".section .rodata,"a"
.p2align 6
.amdhsa_kernel {name}
  .amdhsa_next_free_vgpr {vg}
  .amdhsa_next_free_sgpr {sg}
  .amdhsa_accum_offset {acc}
  .amdhsa_group_segment_fixed_size 0
  .amdhsa_kernarg_size 96
  .amdhsa_user_sgpr_count 2
  .amdhsa_user_sgpr_kernarg_segment_ptr 1
  .amdhsa_system_sgpr_workgroup_id_x 1
.end_amdhsa_kernel
"""
def bf16r(e,v,t=None):
    e(f"v_cvt_pk_bf16_f32 v{v}, v{v}, v{v}\nv_and_b32 v{v}, 0xffff0000, v{v}")
```

```python
from common import *
L_XN=0; L_W=32768; L_PP=L_W+5*16384; L_ST=L_PP+3*8192; K1_LDS=L_ST+4608
def k1():
    e=E()
    e("""s_cmp_ge_u32 s2, 256
s_cbranch_scc1 K1_END
s_load_dwordx4 s[4:7], s[0:1], 0
s_load_dwordx4 s[8:11], s[0:1], 16
s_load_dwordx2 s[12:13], s[0:1], 32
s_load_dwordx4 s[16:19], s[0:1], 48
s_load_dwordx2 s[20:21], s[0:1], 64
s_load_dwordx2 s[22:23], s[0:1], 88
v_lshrrev_b32 v1, 6, v0
v_and_b32 v0, 63, v0
s_nop 0
v_readfirstlane_b32 s24, v1
s_lshr_b32 s25, s2, 2
s_and_b32 s26, s2, 3
v_and_b32 v2, 31, v0
v_lshrrev_b32 v3, 5, v0
v_lshlrev_b32 v4, 10, v2
v_lshl_add_u32 v4, v3, 4, v4
s_lshl_b32 s27, s25, 15
s_lshl_b32 s28, s24, 7
s_add_u32 s27, s27, s28
v_lshrrev_b32 v5, 2, v0
v_and_b32 v6, 3, v0
v_lshlrev_b32 v9, 4, v0
s_waitcnt lgkmcnt(0)""")
    srd(e,32,4,2097152)
    srd(e,36,22,WS_SIZE)
    for i in range(4): e(f"buffer_load_dwordx4 {vr(16+4*i,4)}, v4, s[32:35], s27 offen offset:{32*i}")
    e("""v_and_b32 v10, 15, v0
v_lshrrev_b32 v11, 2, v10
v_lshlrev_b32 v11, 6, v11
v_and_b32 v10, 3, v0
v_lshl_add_u32 v11, v10, 3, v11
v_bfe_u32 v10, v0, 4, 1
v_lshl_add_u32 v11, v10, 5, v11
v_lshl_add_u32 v7, v3, 9, v11
v_lshl_add_u32 v8, v3, 8, v11
s_mov_b32 s59, 0
s_cmp_ge_u32 s24, 5
s_cbranch_scc1 K1_PP
s_cmp_eq_u32 s24, 4
s_cbranch_scc1 K1_KVSET""")
    srd(e,40,6,524288)
    e("""s_lshl_b32 s29, s26, 2
s_add_u32 s29, s29, s24
s_lshl_b32 s30, s29, 6
v_lshlrev_b32 v12, 10, v5
v_lshl_add_u32 v12, v6, 4, v12
v_add_u32 v12, s30, v12
s_mov_b32 s31, 16384
s_mov_b32 s59, 1
s_branch K1_WLOAD
K1_KVSET:
s_cmp_ge_u32 s26, 2
s_cbranch_scc1 K1_LN
s_cmp_eq_u32 s26, 0
s_cselect_b32 s40, s8, s10
s_cselect_b32 s41, s9, s11
s_mov_b32 s42, 16384
s_mov_b32 s43, 0x00020000
v_lshlrev_b32 v12, 5, v5
v_and_b32 v10, 1, v0
v_lshl_add_u32 v12, v10, 4, v12
s_mov_b32 s31, 512
s_mov_b32 s59, 1
K1_WLOAD:
s_lshl_b32 s44, s24, 14
s_add_u32 s44, s44, %d
v_add_u32 v13, s44, v7
s_mov_b32 s45, 0
s_mov_b32 m0, s44""" % L_W)
    for i in range(16):
        e(f"s_nop 0\nbuffer_load_dwordx4 v12, s[40:43], s45 offen lds\ns_add_u32 s45, s45, s31\ns_add_u32 m0, m0, 1024")
    e("s_waitcnt vmcnt(16)\ns_branch K1_LN2")
    e("""K1_PP:
s_mul_i32 s46, s2, 3
s_add_u32 s46, s46, s24
s_sub_u32 s46, s46, 5
s_cmp_ge_u32 s46, 580
s_cbranch_scc1 K1_LN
s_mov_b32 s59, 2
s_cmp_ge_u32 s46, 344
s_cbranch_scc1 K1_PPD
s_cmp_ge_u32 s46, 172
s_cselect_b32 s40, s18, s16
s_cselect_b32 s41, s19, s17
s_cselect_b32 s47, 172, 0
s_cselect_b32 s48, 1024, 0
s_mov_b32 s42, 1409024
s_mov_b32 s43, 0x00020000
s_sub_u32 s46, s46, s47
s_lshr_b32 s47, s46, 2
s_and_b32 s46, s46, 3
s_mov_b32 s49, 2752
v_mul_lo_u32 v12, s49, v5
v_lshl_add_u32 v12, v6, 4, v12
s_mul_i32 s45, s46, 352256
s_lshl_b32 s49, s47, 6
s_add_u32 s45, s45, s49
s_mov_b32 s31, 44032
s_lshl_b32 s50, s47, 16
s_lshl_b32 s49, s46, 14
s_add_u32 s50, s50, s49
s_add_u32 s50, s50, s48
s_add_u32 s50, s50, %d
s_mov_b32 s51, 8192
s_mov_b32 s52, 2048
s_mov_b32 s53, 256
v_mov_b32 v13, v7
s_branch K1_PPL
K1_PPD:
s_cmp_ge_u32 s46, 516
s_cselect_b32 s40, s12, s20
s_cselect_b32 s41, s13, s21
s_mov_b32 s42, 1409024
s_cselect_b32 s42, 524288, s42
s_mov_b32 s47, 344
s_cselect_b32 s47, 516, s47
s_mov_b32 s51, 352256
s_cselect_b32 s51, 131072, s51
s_mov_b32 s50, %d
s_cselect_b32 s50, %d, s50
s_mov_b32 s43, 0x00020000
s_sub_u32 s46, s46, s47
s_lshr_b32 s47, s46, 1
s_and_b32 s46, s46, 1
v_lshlrev_b32 v12, 10, v5
v_lshl_add_u32 v12, v6, 4, v12
s_lshl_b32 s45, s47, 14
s_lshl_b32 s49, s46, 9
s_add_u32 s45, s45, s49
s_mov_b32 s31, 64
s_lshl_b32 s49, s47, 12
s_add_u32 s50, s50, s49
s_mul_i32 s49, s46, s51
s_lshl_b32 s49, s49, 1
s_add_u32 s50, s50, s49
s_mov_b32 s52, 1024
s_mov_b32 s53, 512
v_mov_b32 v13, v8
K1_PPL:
s_sub_u32 s44, s24, 5
s_lshl_b32 s44, s44, 13
s_add_u32 s44, s44, %d
v_add_u32 v13, s44, v13
v_add_u32 v14, s53, v13
s_mov_b32 m0, s44""" % (WGU,WD,WO,L_PP))
    for i in range(8):
        e(f"s_nop 0\nbuffer_load_dwordx4 v12, s[40:43], s45 offen lds\ns_add_u32 s45, s45, s31\ns_add_u32 m0, m0, 1024")
    e("s_waitcnt vmcnt(8)\ns_branch K1_LN2\nK1_LN:\ns_waitcnt vmcnt(0)\nK1_LN2:")
    for i in range(16):
        e(f"v_lshlrev_b32 v{32+2*i}, 16, v{16+i}\nv_and_b32 v{33+2*i}, 0xffff0000, v{16+i}")
    e("v_add_f32 v64, v32, v33\nv_add_f32 v65, v34, v35")
    for i in range(36,64,2): e(f"v_add_f32 v64, v64, v{i}\nv_add_f32 v65, v65, v{i+1}")
    e("v_add_f32 v64, v64, v65\nv_mul_f32 v64, 0x3d000000, v64\nv_mov_b32 v65, 0\nv_mov_b32 v66, 0")
    for i in range(32,64,2):
        e(f"v_sub_f32 v67, v{i}, v64\nv_sub_f32 v68, v{i+1}, v64\nv_fmac_f32 v65, v67, v67\nv_fmac_f32 v66, v68, v68")
    e(f"""v_add_f32 v65, v65, v66
v_mul_u32_u24 v66, 144, v2
v_add_u32 v66, {L_ST}, v66
s_lshl_b32 s54, s24, 4
v_lshl_add_u32 v67, v3, 3, v66
v_add_u32 v67, s54, v67
ds_write_b64 v67, v[64:65]
s_waitcnt lgkmcnt(0)
s_barrier""")
    for i in range(8): e(f"ds_read_b128 {vr(68+4*i,4)}, v66 offset:{16*i}")
    e("s_waitcnt lgkmcnt(0)\nv_add_f32 v64, v68, v70\nv_add_f32 v65, v69, v71")
    for i in range(72,100,2): e(f"v_add_f32 v64, v64, v{i}\nv_add_f32 v65, v65, v{i+1}")
    e("v_mul_f32 v64, 0x3d800000, v64\nv_mov_b32 v66, 0")
    for i in range(68,100,2): e(f"v_sub_f32 v67, v{i}, v64\nv_fmac_f32 v66, v67, v67")
    e("v_mul_f32 v66, 0x42000000, v66\nv_add_f32 v65, v65, v66\nv_mul_f32 v65, 0x3b000000, v65")
    bf16r(e,64); bf16r(e,65)
    e("v_add_f32 v65, 0x3727c5ac, v65"); bf16r(e,65)
    e("v_sqrt_f32 v65, v65\ns_nop 0"); bf16r(e,65)
    e("v_rcp_f32 v65, v65")
    for i in range(16):
        a=32+2*i
        e(f"v_sub_f32 v{a}, v{a}, v64\nv_sub_f32 v{a+1}, v{a+1}, v64\nv_cvt_pk_bf16_f32 v67, v{a}, v{a+1}")
        e(f"v_lshlrev_b32 v{a}, 16, v67\nv_and_b32 v{a+1}, 0xffff0000, v67\nv_mul_f32 v{a}, v{a}, v65\nv_mul_f32 v{a+1}, v{a+1}, v65\nv_cvt_pk_bf16_f32 v{16+i}, v{a}, v{a+1}")
    e("s_lshl_b32 s54, s24, 12\nv_add_u32 v67, s54, v9")
    for i in range(4): e(f"ds_write_b128 v67, {vr(16+4*i,4)} offset:{L_XN+1024*i}")
    e(f"""s_lshr_b32 s55, s24, 1
s_cmp_lg_u32 s55, s26
s_cbranch_scc1 K1_NOXN
s_lshl_b32 s55, s25, 15
s_add_u32 s55, s55, s54""")
    for i in range(4): e(f"buffer_store_dwordx4 {vr(16+4*i,4)}, v9, s[36:39], s55 offen offset:{1024*i}")
    e("""K1_NOXN:
s_cmp_eq_u32 s59, 1
s_cbranch_scc1 K1_MM
s_waitcnt lgkmcnt(0)
s_barrier
s_cmp_eq_u32 s59, 0
s_cbranch_scc1 K1_END
s_waitcnt vmcnt(0)""")
    for i in range(8):
        e(f"ds_read_b64_tr_b16 {vr(32+4*i,2)}, v13 offset:{1024*i}\nds_read_b64_tr_b16 {vr(34+4*i,2)}, v14 offset:{1024*i}")
    for i in range(8):
        e(f"s_waitcnt lgkmcnt({14-2*i})\nbuffer_store_dwordx4 {vr(32+4*i,4)}, v9, s[36:39], s50 offen")
        if i==3: e("s_mul_i32 s49, s52, 3\ns_sub_u32 s50, s50, s49\ns_add_u32 s50, s50, s51")
        else: e("s_add_u32 s50, s50, s52")
    e("s_branch K1_END\nK1_MM:\ns_waitcnt vmcnt(0)")
    for i in range(16):
        e(f"ds_read_b64_tr_b16 {vr(128+4*i,2)}, v13 offset:{1024*i}\nds_read_b64_tr_b16 {vr(130+4*i,2)}, v13 offset:{1024*i+256}")
    e("s_waitcnt lgkmcnt(0)\ns_mov_b32 m0, s44")
    for i in range(16):
        e(f"s_nop 0\nbuffer_load_dwordx4 v12, s[40:43], s45 offen lds\ns_add_u32 s45, s45, s31\ns_add_u32 m0, m0, 1024")
    e("s_barrier")
    for i in range(16): e(f"v_mov_b32 v{100+i}, 0")
    e("s_cmp_eq_u32 s24, 4\ns_cselect_b32 s56, s26, 0")
    def mm(lo,hi,swap):
        for s in range(lo,hi): e(f"ds_read_b128 {vr(32+4*(s-lo),4)}, v9 offset:{L_XN+1024*s}")
        for s in range(lo,hi):
            e(f"s_waitcnt lgkmcnt({min(15,hi-1-s)})")
            a,b=vr(128+4*s,4),vr(32+4*(s-lo),4)
            if swap: a,b=b,a
            e(f"v_mfma_f32_32x32x16_bf16 v[100:115], {a}, {b}, v[100:115]")
    def second():
        e("s_waitcnt vmcnt(0)")
        for i in range(16):
            e(f"ds_read_b64_tr_b16 {vr(192+4*i,2)}, v13 offset:{1024*i}\nds_read_b64_tr_b16 {vr(194+4*i,2)}, v13 offset:{1024*i+256}")
        e("s_waitcnt lgkmcnt(0)")
    e("s_cmp_eq_u32 s56, 1\ns_cbranch_scc1 K1_V")
    mm(0,16,False); second(); mm(16,32,False)
    e("s_nop 15\ns_cmp_eq_u32 s24, 4\ns_cbranch_scc1 K1_K")
    c=0.25*1.4426950408889634
    import struct
    cb=struct.unpack('<I',struct.pack('<f',c))[0]
    for i in range(16): e(f"v_mul_f32 v{100+i}, {cb:#x}, v{100+i}")
    for i in range(8): e(f"v_cvt_pk_bf16_f32 v{32+i}, v{100+2*i}, v{101+2*i}")
    e(f"""s_lshl_b32 s55, s25, 15
s_lshl_b32 s54, s29, 11
s_add_u32 s55, s55, s54
s_add_u32 s55, s55, {QO}
buffer_store_dwordx4 v[32:35], v9, s[36:39], s55 offen
buffer_store_dwordx4 v[36:39], v9, s[36:39], s55 offen offset:1024
s_branch K1_END
K1_K:""")
    for i in range(4): e(f"v_cvt_pk_bf16_f32 v{32+i}, v{100+2*i}, v{101+2*i}")
    e(f"s_lshl_b32 s55, s25, 10\ns_add_u32 s55, s55, {KV}\nbuffer_store_dwordx4 v[32:35], v9, s[36:39], s55 offen\nv_mov_b32 v40, 0")
    for i in range(4):
        e(f"v_lshlrev_b32 v41, 16, v{32+i}\nv_and_b32 v42, 0xffff0000, v{32+i}\nv_fmac_f32 v40, v41, v41\nv_fmac_f32 v40, v42, v42")
    e("v_mov_b32 v41, v40\ns_nop 1\nv_permlane32_swap_b32 v40, v41\ns_nop 1\nv_add_f32 v40, v40, v41")
    for o in (0x041F,0x081F,0x101F,0x201F,0x401F):
        e(f"ds_swizzle_b32 v41, v40 offset:{o:#x}\ns_waitcnt lgkmcnt(0)\nv_max_f32 v40, v40, v41")
    e(f"""s_lshl_b32 s55, s25, 2
s_add_u32 s55, s55, {KN}
v_mov_b32 v41, 0
s_mov_b64 exec, 1
buffer_store_dword v40, v41, s[36:39], s55 offen
s_branch K1_END
K1_V:""")
    mm(0,16,True); second(); mm(16,32,True)
    e("s_nop 15")
    for i in range(8): e(f"v_cvt_pk_bf16_f32 v{32+i}, v{100+2*i}, v{101+2*i}")
    e(f"""v_lshlrev_b32 v40, 4, v2
v_lshl_add_u32 v40, v3, 8, v40
s_lshl_b32 s55, s25, 10
s_add_u32 s55, s55, {KV+65536}
s_mov_b32 exec_lo, 0xffff
s_mov_b32 exec_hi, 0xffff
buffer_store_dwordx4 v[32:35], v40, s[36:39], s55 offen
buffer_store_dwordx4 v[36:39], v40, s[36:39], s55 offen offset:512
K1_END:
s_endpgm""")
    return e.txt()
```

```python
from common import *
import struct,math
def fb(x): return "%#x"%struct.unpack('<I',struct.pack('<f',x))[0]
L_H=131072; L_O=L_H+11*2048; L_C=L_O+8192; K2_LDS=L_C+64
QA,QB,CA,CB,S0,S1,P0,P1,OA,OB,KR,VR=16,20,32,48,64,80,96,104,112,128,144,160
def mf(d,a,b,c): return f"v_mfma_f32_32x32x16_bf16 {vr(d,16)}, {vr(a,4)}, {vr(b,4)}, {c if isinstance(c,str) else vr(c,16)}"
def unit(e,S,P,qk,pv,extra=()):
    ex=[f"v_exp_f32 v{S+i}, v{S+i}" for i in range(16)]
    cv=[f"v_cvt_pk_bf16_f32 v{P+i}, v{S+2*i}, v{S+2*i+1}" for i in range(8)]
    seq=[qk]+list(extra)+ex[0:4]+[pv[0]]+cv[0:1]+ex[4:6]+cv[1:2]+ex[6:8]+cv[2:3]+[pv[1]]+ex[8:10]+cv[3:4]+ex[10:12]+cv[4:5]+ex[12:16]+cv[5:8]
    for x in seq: e(x)
def k2():
    e=E()
    e("""s_cmp_ge_u32 s2, 256
s_cbranch_scc1 K2_END
s_load_dwordx2 s[22:23], s[0:1], 88
v_lshrrev_b32 v1, 6, v0
v_and_b32 v0, 63, v0
s_nop 0
v_readfirstlane_b32 s24, v1
s_lshr_b32 s25, s2, 2
s_and_b32 s26, s2, 3
v_and_b32 v2, 31, v0
v_lshrrev_b32 v3, 5, v0
v_lshlrev_b32 v9, 4, v0
s_lshl_b32 s27, s25, 15
s_waitcnt lgkmcnt(0)""")
    srd(e,36,22,WS_SIZE)
    e(f"s_cmp_ge_u32 s24, 4\ns_cbranch_scc1 K2_FFN")
    e(f"""s_lshl_b32 s28, s26, 13
s_lshl_b32 s29, s24, 11
s_add_u32 s28, s28, s29
s_add_u32 s28, s28, s27
s_add_u32 s28, s28, {QO}
buffer_load_dwordx4 {vr(QA,4)}, v9, s[36:39], s28 offen
buffer_load_dwordx4 {vr(QB,4)}, v9, s[36:39], s28 offen offset:1024
v_lshlrev_b32 v4, 2, v0
s_mov_b32 s28, {KN}
buffer_load_dword v5, v4, s[36:39], s28 offen
s_lshl_b32 s29, s24, 10
s_mov_b32 m0, s29
s_add_u32 s28, s29, {KV}""")
    for i in range(16):
        e(f"s_nop 0\nbuffer_load_dwordx4 v9, s[36:39], s28 offen lds\ns_add_u32 m0, m0, 65536\ns_add_u32 s28, s28, 65536")
        e(f"s_nop 0\nbuffer_load_dwordx4 v9, s[36:39], s28 offen lds\ns_sub_u32 m0, m0, {65536-4096}\ns_sub_u32 s28, s28, {65536-4096}")
    for i in range(32): e(f"v_mov_b32 v{VR+i}, 0x3f803f80")
    for i in range(32): e(f"v_mov_b32 v{OA+i}, 0")
    for i in range(8): e(f"v_mov_b32 v{P1+i}, 0")
    e(f"""v_lshlrev_b32 v6, 4, v2
v_lshl_add_u32 v6, v3, 8, v6
v_add_u32 v6, 65536, v6
v_mov_b32 v7, v9
s_mov_b32 s30, 0xffff
s_mov_b32 s31, 0xffff
s_waitcnt vmcnt(32)""")
    for o in (0x041F,0x081F,0x101F,0x201F,0x401F):
        e(f"ds_swizzle_b32 v8, v5 offset:{o:#x}\ns_waitcnt lgkmcnt(0)\nv_max_f32 v5, v5, v8")
    e("v_mov_b32 v8, v5\ns_nop 1\nv_permlane32_swap_b32 v5, v8\ns_nop 1\nv_max_f32 v5, v5, v8")
    for Q,C in ((QA,CA),(QB,CB)):
        e("v_mov_b32 v10, 0")
        for i in range(4):
            e(f"v_lshlrev_b32 v11, 16, v{Q+i}\nv_and_b32 v12, 0xffff0000, v{Q+i}\nv_fmac_f32 v10, v11, v11\nv_fmac_f32 v10, v12, v12")
        e(f"v_mov_b32 v11, v10\ns_nop 1\nv_permlane32_swap_b32 v10, v11\ns_nop 1\nv_add_f32 v10, v10, v11\nv_mul_f32 v10, v10, v5\nv_sqrt_f32 v10, v10\ns_nop 0\nv_mul_f32 v{C}, {fb(-1.0001)}, v10")
        for i in range(1,16): e(f"v_mov_b32 v{C+i}, v{C}")
    e(f"""v_min_f32 v10, v{CA}, v{CB}
v_cmp_nle_f32 vcc, {fb(-50.0)}, v10
s_mov_b32 s28, 0
s_waitcnt vmcnt(24)
s_barrier
s_cbranch_vccnz K2_SLOW
ds_read_b128 {vr(KR,4)}, v7
ds_read_b128 {vr(KR+4,4)}, v7 offset:1024
s_mov_b64 exec, s[30:31]
ds_read_b128 {vr(VR,4)}, v6
ds_read_b128 {vr(VR+4,4)}, v6 offset:512
s_mov_b64 exec, -1
s_waitcnt lgkmcnt(0)
{mf(S0,KR,QA,CA)}
s_nop 7
s_nop 3
.p2align 4
K2_LOOP:""")
    for t in range(4):
        k0=KR+4*t; k1=KR+4*((t+1)%4); k2=KR+4*((t+2)%4); vp=VR+8*((t+3)%4); v0=VR+8*t; v1=VR+8*((t+1)%4)
        ex=[f"ds_read_b128 {vr(k2,4)}, v7 offset:{1024*(t+2)}","s_mov_b64 exec, s[30:31]",
            f"ds_read_b128 {vr(v1,4)}, v6 offset:{1024*(t+1)}",f"ds_read_b128 {vr(v1+4,4)}, v6 offset:{1024*(t+1)+512}","s_mov_b64 exec, -1"]
        unit(e,S0,P0,mf(S1,k0,QB,CB),[mf(OB,vp,P1,OB),mf(OB,vp+4,P1+4,OB)],ex)
        e("s_waitcnt lgkmcnt(3)")
        ex=[]
        if t==3: ex=["v_add_u32 v6, 4096, v6","v_add_u32 v7, 4096, v7","s_add_u32 s28, s28, 1"]
        unit(e,S1,P1,mf(S0,k1,QA,CA),[mf(OA,v0,P0,OA),mf(OA,v0+4,P0+4,OA)],ex)
    e(f"""s_cmp_lg_u32 s28, 3
s_cbranch_scc1 K2_NB
s_waitcnt vmcnt(0)
s_barrier
K2_NB:
s_cmp_lt_u32 s28, 16
s_cbranch_scc1 K2_LOOP
s_nop 0
{mf(OB,VR+24,P1,OB)}
{mf(OB,VR+28,P1+4,OB)}
K2_FIN:
s_nop 15
v_rcp_f32 v10, v{OA+8}
v_rcp_f32 v11, v{OB+8}
s_lshl_b32 s29, s24, 11
s_add_u32 s29, s29, {L_O}
v_add_u32 v12, s29, v9""")
    for O,r in ((OA,10),(OB,11)):
        for i in range(8): e(f"v_mul_f32 v{O+i}, v{O+i}, v{r}")
        for i in range(4): e(f"v_cvt_pk_bf16_f32 v{O+i}, v{O+2*i}, v{O+2*i+1}")
    e(f"""ds_write_b128 v12, {vr(OA,4)}
ds_write_b128 v12, {vr(OB,4)} offset:1024
s_waitcnt lgkmcnt(0)
s_barrier
s_endpgm
K2_SLOW:
s_waitcnt vmcnt(0)
s_barrier
v_mov_b32 v13, {fb(-3e38)}
v_mov_b32 v14, {fb(-3e38)}
K2_SLOOP:
ds_read_b128 {vr(KR,4)}, v7
s_mov_b64 exec, s[30:31]
ds_read_b128 {vr(VR,4)}, v6
ds_read_b128 {vr(VR+4,4)}, v6 offset:512
s_mov_b64 exec, -1
s_waitcnt lgkmcnt(0)""")
    for Q,O,m in ((QA,OA,13),(QB,OB,14)):
        e(mf(S0,KR,Q,"0")+"\ns_nop 15")
        e(f"v_max3_f32 v10, v{S0}, v{S0+1}, v{m}")
        for i in range(2,16,2): e(f"v_max3_f32 v10, v{S0+i}, v{S0+i+1}, v10")
        e(f"v_mov_b32 v11, v10\ns_nop 1\nv_permlane32_swap_b32 v10, v11\ns_nop 1\nv_max_f32 v10, v10, v11\nv_sub_f32 v11, v{m}, v10\nv_exp_f32 v11, v11\nv_mov_b32 v{m}, v10")
        for i in range(16): e(f"v_sub_f32 v{S0+i}, v{S0+i}, v10\nv_exp_f32 v{S0+i}, v{S0+i}\nv_mul_f32 v{O+i}, v{O+i}, v11")
        for i in range(8): e(f"v_cvt_pk_bf16_f32 v{P0+i}, v{S0+2*i}, v{S0+2*i+1}")
        e("s_nop 1\n"+mf(O,VR,P0,O)+"\n"+mf(O,VR+4,P0+4,O)+"\ns_nop 15")
    e("""v_add_u32 v6, 1024, v6
v_add_u32 v7, 1024, v7
s_add_u32 s28, s28, 1
s_cmp_lt_u32 s28, 64
s_cbranch_scc1 K2_SLOOP
s_branch K2_FIN""")
    G,U,RG,X=16,32,64,128
    e(f"""K2_FFN:
s_setprio 2
s_sub_u32 s24, s24, 4
s_add_u32 s28, s27, {XN}""")
    for s in range(32):
        e(f"buffer_load_dwordx4 {vr(X+4*s,4)}, v9, s[36:39], s28 offen offset:{1024*(s%4)}")
        if s%4==3: e("s_add_u32 s28, s28, 4096")
    e(f"""s_mul_i32 s29, s26, 11
s_min_u32 s29, s29, 32
s_mov_b32 s30, s24
s_cmp_eq_u32 s26, 3
s_cselect_b32 s31, 0, 1
s_or_b32 s31, s31, s24
s_cmp_eq_u32 s31, 0
s_cselect_b32 s30, 4, s30
s_add_u32 s32, s29, s30
s_lshl_b32 s32, s32, 16
s_add_u32 s32, s32, {WGU}
s_mul_i32 s33, s24, 86
s_lshl_b32 s34, s29, 1
s_add_u32 s33, s33, s34
s_lshl_b32 s33, s33, 12
s_add_u32 s33, s33, {WD}
s_lshl_b32 s34, s24, 5
s_lshl_b32 s35, s26, 3
s_add_u32 s34, s34, s35
s_lshl_b32 s34, s34, 12
s_add_u32 s34, s34, {WO}
s_mov_b32 s40, s32""")
    for i in range(16):
        e(f"buffer_load_dwordx4 {vr(RG+4*i,4)}, v9, s[36:39], s40 offen offset:{1024*(i%4)}")
        if i%4==3: e("s_add_u32 s40, s40, 4096")
    c1=-2*math.log2(math.e)*math.sqrt(2/math.pi); c2=c1*0.044715
    e(f"""v_mov_b32 v4, {fb(c2)}
v_mov_b32 v5, 0
v_mov_b32 v6, {L_C}
v_add_u32 v7, {L_H}, v9
v_mov_b32 v10, 0
v_mov_b32 v11, 0
v_mov_b32 v12, 0
v_mov_b32 v13, 0
ds_write_b32 v6, v5
s_cmp_lg_u32 s31, 0
s_cbranch_scc1 K2_F0
ds_write_b128 v7, v[10:13]
ds_write_b128 v7, v[10:13] offset:1024
K2_F0:
s_waitcnt lgkmcnt(0)
s_barrier
s_mov_b32 s44, 0
.p2align 4
K2_FLOOP:
s_add_u32 s41, s30, 4
s_add_u32 s42, s32, 262144
s_cmp_lt_u32 s41, 11
s_cselect_b32 s42, s42, s33""")
    for i in range(64):
        e("s_waitcnt vmcnt(15)")
        A=G if i%2==0 else U
        e(mf(A,RG+4*(i%16),X+4*(i//2),A if i>1 else "0"))
        if i==48: e("s_mov_b32 s40, s42")
        e(f"buffer_load_dwordx4 {vr(RG+4*(i%16),4)}, v9, s[36:39], s40 offen offset:{1024*(i%4)}")
        if i%4==3: e("s_add_u32 s40, s40, 4096")
    e(f"s_cmp_lg_u32 s44, 0\ns_cbranch_scc1 K2_FNB\ns_barrier\ns_mov_b32 s44, 1\nK2_FNB:\ns_lshl_b32 s43, s30, 11\nv_add_u32 v8, s43, v7\ns_nop 9")
    for i in range(16): e(f"v_mul_f32 v{48+i}, v{G+i}, v{G+i}")
    for i in range(16): e(f"v_fmaak_f32 v{48+i}, v{48+i}, v4, {fb(c1)}")
    for i in range(16): e(f"v_mul_f32 v{48+i}, v{48+i}, v{G+i}")
    for i in range(16): e(f"v_exp_f32 v{48+i}, v{48+i}\nv_mul_f32 v{G+i}, v{G+i}, v{U+i}")
    for i in range(16): e(f"v_add_f32 v{48+i}, 1.0, v{48+i}")
    for i in range(16): e(f"v_rcp_f32 v{48+i}, v{48+i}")
    for i in range(16): e(f"v_mul_f32 v{G+i}, v{G+i}, v{48+i}")
    for i in range(8): e(f"v_cvt_pk_bf16_f32 v{48+i}, v{G+2*i}, v{G+2*i+1}")
    e(f"""ds_write_b128 v8, v[48:51]
ds_write_b128 v8, v[52:55] offset:1024
s_mov_b32 s30, s41
s_mov_b32 s32, s42
s_cmp_lt_u32 s41, 11
s_cbranch_scc1 K2_FLOOP
v_mov_b32 v5, 1
s_waitcnt lgkmcnt(0)
s_mov_b64 exec, 1
ds_add_u32 v6, v5
s_mov_b64 exec, -1
K2_POLL:
ds_read_b32 v5, v6
s_waitcnt lgkmcnt(0)
v_readfirstlane_b32 s43, v5
s_cmp_ge_u32 s43, 4
s_cbranch_scc1 K2_P2
s_sleep 2
s_branch K2_POLL
K2_P2:""")
    AC=[16,32,48,128]; HB=144; W2=160
    for k in range(3): e(f"ds_read_b128 {vr(HB+4*k,4)}, v7 offset:{1024*k}")
    n=0
    for k in range(22):
        if k+3<22: e(f"ds_read_b128 {vr(HB+4*((k+3)%4),4)}, v7 offset:{1024*(k+3)}")
        e(f"s_waitcnt lgkmcnt({min(3,21-k)})")
        for t in range(4):
            i=4*k+t
            e("s_waitcnt vmcnt(15)")
            e(mf(AC[t],RG+4*(i%16),HB+4*(k%4),AC[t] if k else "0"))
            if i==72: e("s_mov_b32 s40, s34")
            e(f"buffer_load_dwordx4 {vr(RG+4*(i%16),4)}, v9, s[36:39], s40 offen offset:{1024*(i%4)}")
            if i%4==3: e("s_add_u32 s40, s40, 4096")
    for i in range(16):
        e(f"buffer_load_dwordx4 {vr(W2+4*i,4)}, v9, s[36:39], s40 offen offset:{1024*(i%4)}")
        if i%4==3: e("s_add_u32 s40, s40, 4096")
    e(f"""v_add_u32 v8, {L_O}, v9
s_lshl_b32 s28, s26, 21
s_add_u32 s28, s28, s27
s_lshl_b32 s29, s24, 13
s_add_u32 s28, s28, s29
s_add_u32 s28, s28, {PART}
s_add_u32 s29, s28, 4096
s_waitcnt vmcnt(0)
s_barrier""")
    OF=224
    for k in range(8): e(f"ds_read_b128 {vr(OF+4*k,4)}, v8 offset:{1024*k}")
    for t in range(4):
        for k in range(8):
            if t==0: e(f"s_waitcnt lgkmcnt({7-k})")
            i=4*k+t
            w=RG+4*((88+i)%16) if i<16 else W2+4*(i-16)
            e(mf(AC[t],w,OF+4*k,AC[t]))
    for t in range(4):
        A=AC[t]
        if t==0: pass
        if t==3: e("s_nop 7")
        for i in range(8): e(f"v_cvt_pk_bf16_f32 v{A+i}, v{A+2*i}, v{A+2*i+1}")
        e("s_nop 1")
        for s in range(2):
            e(f"v_permlane32_swap_b32 v{A+4*s}, v{A+4*s+2}\nv_permlane32_swap_b32 v{A+4*s+1}, v{A+4*s+3}")
        for s in range(2):
            e(f"buffer_store_dwordx4 {vr(A+4*s,4)}, v9, s[36:39], s{28+t//2} offen offset:{(t%2)*2048+1024*s}")
    e("K2_END:\ns_endpgm")
    return e.txt()
def k3():
    e=E()
    e("""s_cmp_ge_u32 s2, 512
s_cbranch_scc1 K3_END
s_load_dwordx2 s[4:5], s[0:1], 0
s_load_dwordx2 s[6:7], s[0:1], 72
s_load_dwordx2 s[22:23], s[0:1], 88
s_lshr_b32 s8, s2, 1
s_and_b32 s9, s2, 1
v_and_b32 v1, 7, v0
v_lshrrev_b32 v2, 3, v0
s_lshl_b32 s9, s9, 5
v_add_u32 v2, s9, v2
s_lshl_b32 s10, s8, 13
v_lshlrev_b32 v3, 10, v1
v_lshl_add_u32 v3, v2, 4, v3
s_lshr_b32 s11, s8, 2
s_lshl_b32 s11, s11, 15
s_and_b32 s12, s8, 3
s_lshl_b32 s12, s12, 7
s_add_u32 s11, s11, s12
v_lshlrev_b32 v4, 9, v2
v_lshl_add_u32 v4, v1, 4, v4
s_waitcnt lgkmcnt(0)""")
    srd(e,32,4,2097152); srd(e,40,6,2097152); srd(e,36,22,WS_SIZE)
    e("buffer_load_dwordx4 v[8:11], v3, s[32:35], s10 offen")
    for g in range(4): e(f"s_add_u32 s13, s11, {PART+(g<<21)}\nbuffer_load_dwordx4 {vr(12+4*g,4)}, v4, s[36:39], s13 offen")
    e("s_waitcnt vmcnt(4)")
    for i in range(4): e(f"v_lshlrev_b32 v{32+2*i}, 16, v{8+i}\nv_and_b32 v{33+2*i}, 0xffff0000, v{8+i}")
    for g in range(4):
        e(f"s_waitcnt vmcnt({3-g})")
        for i in range(4):
            e(f"v_lshlrev_b32 v40, 16, v{12+4*g+i}\nv_and_b32 v41, 0xffff0000, v{12+4*g+i}\nv_add_f32 v{32+2*i}, v{32+2*i}, v40\nv_add_f32 v{33+2*i}, v{33+2*i}, v41")
    for i in range(4): e(f"v_cvt_pk_bf16_f32 v{8+i}, v{32+2*i}, v{33+2*i}")
    e("buffer_store_dwordx4 v[8:11], v3, s[40:43], s10 offen\nK3_END:\ns_endpgm")
    return e.txt()
```

```python
import sys
from common import *
import k1,k2
ref=open('parallel_sum__grouped_kv_mqa__glu_gated_geglu__prompt.s.ref').read().split('\n')
hdr='\n'.join(l for l in ref if l.startswith(';') and '@launch' not in l and 'Override' not in l and 'grid=ceil' not in l)
s=hdr+f"""
; @launch kernel=prep_kernel grid=(256,1,1) block=(512,1,1) lds={k1.K1_LDS}
; @launch kernel=main_kernel grid=(256,1,1) block=(512,1,1) lds={k2.K2_LDS}
; @launch kernel=fin_kernel grid=(512,1,1) block=(256,1,1) lds=0
.amdgcn_target "amdgcn-amd-amdhsa--gfx950"
"""
s+=head('prep_kernel')+k1.k1()+head('main_kernel')+k2.k2()+head('fin_kernel')+k2.k3()
s+=desc('prep_kernel',256)+desc('main_kernel',256)+desc('fin_kernel',48,48)
out=sys.argv[1] if len(sys.argv)>1 else 'parallel_sum__grouped_kv_mqa__glu_gated_geglu__prompt.s'
open(out,'w').write(s)
```
